```python
import torch

def _softmax(x, axis=-1):
    return torch.softmax(x, dim=axis)
def _gelu(x):
    return torch.nn.functional.gelu(x, approximate="tanh")
def _silu(x):
    return torch.nn.functional.silu(x)
def _sigmoid(x):
    return torch.sigmoid(x)
def _layernorm(x, axis=-1, eps=1e-5):
    m = x.mean(dim=axis, keepdim=True)
    v = x.var(dim=axis, keepdim=True, unbiased=False)
    return (x - m) / torch.sqrt(v + eps)
def _scatter_add(tgt, idx, src, axis=0):
    return tgt.clone().index_add_(axis, idx, src)
def _segment_sum(src, seg, n):
    out = torch.zeros((n,) + src.shape[1:], dtype=src.dtype)
    return out.index_add_(0, seg, src)
def _pad(x, pw):
    flat = tuple(v for pair in reversed(pw) for v in pair)
    return torch.nn.functional.pad(x, flat)

kernel_name = 'sequential_preLN__softmax_full_mha__dense_activation_gelu__prompt'

def setup_inputs():

    _w = (lambda a: (lambda t: t.to(torch.bfloat16) if t.is_floating_point() else t)(torch.as_tensor(a)))
    def _A_setup():
        B, S, D = 1, 2048, 448
        return {
            "x": _w((lambda *s: torch.randn(*s, dtype=torch.bfloat16) * 0.05)(B, S, D)),
            "wqkv": _w((lambda *s: torch.randn(*s, dtype=torch.bfloat16) * 0.05)(D, 3 * D)),
            "wo": _w((lambda *s: torch.randn(*s, dtype=torch.bfloat16) * 0.05)(D, D)),
        }
    _A_in = _A_setup()

    def _B_setup():
        B, S, D, F = 1, 2048, 448, 1792
        return {
            "x": _w((lambda *s: torch.randn(*s, dtype=torch.bfloat16) * 0.05)(B, S, D)),
            "w1": _w((lambda *s: torch.randn(*s, dtype=torch.bfloat16) * 0.8)(D, F) * (D ** -0.5)),
            "b1": _w((lambda *s: torch.randn(*s, dtype=torch.bfloat16) * 12.8)(F) * 0.01),
            "w2": _w((lambda *s: torch.randn(*s, dtype=torch.bfloat16) * 0.8)(F, D) * (F ** -0.5)),
            "b2": _w((lambda *s: torch.randn(*s, dtype=torch.bfloat16) * 12.8)(D) * 0.01),
        }
    _B_in = _B_setup()

    return {
        "A_x": _A_in["x"],
        "A_wqkv": _A_in["wqkv"],
        "A_wo": _A_in["wo"],
        "B_x": _B_in["x"],
        "B_w1": _B_in["w1"],
        "B_b1": _B_in["b1"],
        "B_w2": _B_in["w2"],
        "B_b2": _B_in["b2"],
    }

def reference(A_x, A_wqkv, A_wo, B_x, B_w1, B_b1, B_w2, B_b2):
    def _A_ref(x, wqkv, wo):
        B, S, D = x.shape
        H = 16; Dh = D // H
        qkv = (lambda x, *d: x.permute(*d))((x @ wqkv).reshape(B, S, 3, H, Dh), 2, 0, 3, 1, 4)
        q, k, v = qkv[0], qkv[1], qkv[2]
        scale = Dh ** -0.5
        scores = torch.einsum("bhqd,bhkd->bhqk", q, k) * scale
        p = _softmax(scores, axis=-1)
        o = torch.einsum("bhqk,bhkd->bhqd", p, v)
        return (lambda x, *d: x.permute(*d))(o, 0, 2, 1, 3).reshape(B, S, D) @ wo

    def _B_ref(x, w1, b1, w2, b2):
        h = torch.einsum("bsd,df->bsf", x, w1) + b1
        h = _gelu(h)
        return torch.einsum("bsf,fd->bsd", h, w2) + b2

    x = A_x
    h = x + _A_ref(_layernorm(x, axis=-1), A_wqkv, A_wo)
    h2 = h + _B_ref(_layernorm(h, axis=-1), B_w1, B_b1, B_w2, B_b2)
    return h2
```

```python
import re

class Ins:
    __slots__ = ("text", "mn", "ops", "wr", "rd", "kind", "mods", "is_label", "passes")
    def __init__(self, text):
        self.text = text
        self.is_label = False
        parse(self)

def regs_of(op):
    op = op.strip()
    if op.startswith("-") or op.startswith("|"):
        op = op.strip("-|")
    m = re.fullmatch(r"([vas])(\d+)", op)
    if m: return {m.group(1) + m.group(2)}
    m = re.fullmatch(r"([vas])\[(\d+):(\d+)\]", op)
    if m: return {m.group(1) + str(i) for i in range(int(m.group(2)), int(m.group(3)) + 1)}
    if op == "vcc": return {"vcc_lo", "vcc_hi"}
    if op == "exec": return {"exec_lo", "exec_hi"}
    if op in ("vcc_lo", "vcc_hi", "exec_lo", "exec_hi", "m0"): return {op}
    return set()

TRANS = ("v_exp_f32", "v_log_f32", "v_rcp_f32", "v_rsq_f32", "v_sqrt_f32", "v_sin_f32", "v_cos_f32")
NODST_S = ("s_cmp", "s_waitcnt", "s_branch", "s_cbranch", "s_barrier", "s_nop", "s_setprio", "s_endpgm", "s_sleep",
           "s_setpc", "s_bitcmp", "s_setreg", "s_sendmsg")

def parse(i):
    t = i.text.split(";")[0].strip()
    i.wr, i.rd, i.kind, i.mods, i.passes = set(), set(), "other", "", 0
    if not t:
        i.mn, i.ops, i.kind = "", [], "none"; return
    if t.endswith(":") or t.startswith("."):
        i.mn, i.ops, i.kind = t, [], "label" if t.endswith(":") else "dir"
        i.is_label = t.endswith(":"); return
    p = t.split(None, 1)
    i.mn = p[0]
    rest = p[1] if len(p) > 1 else ""
    ops, depth, cur = [], 0, ""
    for ch in rest:
        if ch == "[": depth += 1
        if ch == "]": depth -= 1
        if ch == "," and depth == 0:
            ops.append(cur.strip()); cur = ""
        else: cur += ch
    if cur.strip(): ops.append(cur.strip())
    if ops:
        last = ops[-1].split(None, 1)
        if len(last) > 1 and not i.mn.startswith("s_waitcnt"):
            ops[-1] = last[0]; i.mods = last[1]
    i.ops = ops
    mn = i.mn
    R = [regs_of(o) for o in ops]
    U = lambda l: set().union(*l) if l else set()
    if mn.startswith("v_mfma"):
        i.kind = "mfma"; i.wr = R[0]; i.rd = U(R[1:])
        i.passes = 8 if "32x32x16" in mn else 4 if "16x16x32" in mn else None
        assert i.passes
    elif mn.startswith("v_"):
        i.kind = "valu"
        if mn.startswith("v_permlane32_swap") or mn.startswith("v_permlane16_swap") or mn.startswith("v_swap"):
            i.wr = R[0] | R[1]; i.rd = R[0] | R[1]
        elif mn.startswith("v_nop"):
            pass
        elif re.match(r"v_(add|sub|subrev|addc|subb)_co", mn):
            i.wr = R[0] | R[1]; i.rd = U(R[2:])
        else:
            i.wr = R[0]; i.rd = U(R[1:])
            if re.match(r"v_(fmac|mac|dot2c|pk_fmac|writelane)", mn): i.rd |= R[0]
            if mn.startswith("v_cmpx"): i.wr |= {"exec_lo", "exec_hi"}
    elif mn.startswith("buffer_load") or mn.startswith("global_load"):
        i.kind = "vmem"
        if re.search(r"\blds\b", i.mods) or "_lds_" in mn:
            i.rd = U(R) | {"m0"}; i.kind = "vmem_lds"
        else:
            i.wr = R[0]; i.rd = U(R[1:])
            if "d16" in mn: i.rd |= R[0]
    elif mn.startswith("buffer_store") or mn.startswith("global_store"):
        i.kind = "vstore"; i.rd = U(R)
    elif mn.startswith("buffer_atomic") or mn.startswith("global_atomic"):
        i.kind = "vmem"
        i.rd = U(R)
        if re.search(r"\bsc0\b", i.mods): i.wr = R[0]
    elif mn.startswith("buffer_inv") or mn.startswith("buffer_wbl2"):
        i.kind = "vstore"
    elif mn.startswith("ds_"):
        i.kind = "ds"
        if re.match(r"ds_(read|bpermute|permute|swizzle)", mn) or "_rtn" in mn:
            i.wr = R[0]; i.rd = U(R[1:])
        else:
            i.rd = U(R)
    elif mn.startswith("s_load") or mn.startswith("s_buffer_load") or mn.startswith("s_memtime") or mn.startswith("s_memrealtime") or mn.startswith("s_atomic"):
        i.kind = "smem"; i.wr = R[0]; i.rd = U(R[1:])
    elif mn.startswith("s_"):
        i.kind = "salu"
        if any(mn.startswith(x) for x in NODST_S):
            i.rd = U(R)
        else:
            i.wr = R[0]; i.rd = U(R[1:])
            if "saveexec" in mn:
                i.wr |= {"exec_lo", "exec_hi"}; i.rd |= {"exec_lo", "exec_hi"}
    else:
        raise ValueError("cannot parse: " + t)

def nstates(i):
    if i.kind in ("none", "label", "dir"): return 0
    if i.mn == "s_nop": return int(i.ops[0], 0) + 1
    return 1

def is_v(r): return r[0] in "va" and r[1:].isdigit()
def is_s(r): return (r[0] == "s" and r[1:].isdigit()) or r.startswith("vcc")

def need(p, c):
    n = 0
    if p.kind == "valu":
        vw = {r for r in p.wr if is_v(r)}
        sw = {r for r in p.wr if is_s(r)}
        if c.kind == "mfma" and vw & c.rd: n = max(n, 2)
        if c.kind == "valu":
            if p.mn.split("_e")[0] in TRANS or p.mn in TRANS:
                if not (c.mn in TRANS) and vw & c.rd: n = max(n, 1)
            if (c.mn.startswith("v_permlane") or "dpp" in c.mn or "row_" in c.mods or "quad_perm" in c.mods) and vw & c.rd: n = max(n, 2)
            if c.mn.startswith("v_readfirstlane") or c.mn.startswith("v_readlane"):
                if vw & c.rd: n = max(n, 1)
                if sw & c.rd: n = max(n, 4)
            if sw & c.rd: n = max(n, 2)
            if ("sdwa" in p.mn or "op_sel:" in p.mods and not p.mn.startswith("v_pk")) and vw & (c.rd | c.wr): n = max(n, 1)
        if c.kind in ("vmem", "vmem_lds", "vstore") and sw & c.rd: n = max(n, 5)
        if {"exec_lo", "exec_hi"} & p.wr:
            if c.kind == "mfma": n = max(n, 4)
            if c.kind == "valu": n = max(n, 4 if (c.mn.startswith("v_read") or c.mn.startswith("v_perml")) else 0)
    if p.kind == "mfma":
        big = 12 if p.passes == 8 else 8
        if c.kind == "mfma":
            cC = regs_of(c.ops[3]); cAB = regs_of(c.ops[1]) | regs_of(c.ops[2])
            if p.wr & cAB: n = max(n, big)
            if p.wr & cC and not (p.wr == cC and p.passes == c.passes): n = max(n, 10 if p.passes == 8 else 6)
            if p.wr & c.wr and not (p.wr & cC): n = max(n, big)
        elif c.kind in ("valu", "vmem", "vmem_lds", "vstore", "ds"):
            if p.wr & (c.rd | c.wr): n = max(n, big)
            if c.kind == "valu" and regs_of(p.ops[3]) & c.wr: n = max(n, 7 if p.passes == 8 else 3)
    if p.kind == "salu" and "m0" in p.wr and c.kind == "vmem_lds": n = max(n, 1)
    if p.kind == "vstore" and ("x4" in p.mn or "x3" in p.mn):
        data = regs_of(p.ops[0]) if p.mn.startswith("buffer") else regs_of(p.ops[1])
        if data & c.wr: n = max(n, 2 if c.kind == "valu" else 1)
    return n

WINDOW = 24

def fix_hazards(seq):
    out = []
    for c in seq:
        if c.kind not in ("none", "label", "dir"):
            dist, req = 0, 0
            for p in reversed(out[-4 * WINDOW:]):
                if dist >= 20: break
                k = need(p, c)
                if k > dist: req = max(req, k - dist)
                dist += nstates(p)
            while req > 0:
                k = min(req, 16)
                out.append(Ins(f"s_nop {k-1}")); req -= k
        out.append(c)
    return out

def check_edges(seq):
    lab = {i.mn[:-1]: n for n, i in enumerate(seq) if i.is_label}
    for n, b in enumerate(seq):
        if b.mn.startswith("s_branch") or b.mn.startswith("s_cbranch"):
            tgt = lab.get(b.ops[0])
            if tgt is None: raise ValueError("unknown label " + b.ops[0])
            pre = [x for x in seq[max(0, n - 40):n + 1]]
            post = seq[tgt:tgt + 40]
            d0 = 0
            for c in post:
                if c.kind in ("none", "label", "dir"): continue
                dist = d0
                for p in reversed(pre):
                    if dist >= 20: break
                    if need(p, c) > dist:
                        raise ValueError(f"hazard across branch {b.text}: {p.text} -> {c.text} dist {dist}")
                    dist += nstates(p)
                d0 += nstates(c)
                if d0 >= 20 or c.mn.startswith("s_branch") or c.mn == "s_endpgm": break

def parse_wait(i):
    vm = lg = None
    t = i.text.split(";")[0]
    m = re.search(r"vmcnt\((\d+)\)", t)
    if m: vm = int(m.group(1))
    m = re.search(r"lgkmcnt\((\d+)\)", t)
    if m: lg = int(m.group(1))
    return vm, lg

def auto_waits(seq, insert=True, name=""):
    out = []
    vq = []
    lq = []
    for c in seq:
        if (c.is_label or c.mn.startswith("s_cbranch") or c.mn.startswith("s_branch")) and "pend-ok" not in c.text:
            pend = [r for r in vq if r] + [r for _, r in lq if r]
            if pend: raise ValueError(f"{name}: loads pending at control flow {c.text}: {pend[:3]}")
        if c.kind in ("none", "label", "dir"):
            out.append(c); continue
        if c.mn == "s_waitcnt":
            vm, lg = parse_wait(c)
            if vm is not None and len(vq) > vm: vq = vq[len(vq) - vm:] if vm else []
            if lg is not None:
                if lg == 0: lq = []
                elif len(lq) > lg and all(k == "ds" for k, _ in lq): lq = lq[len(lq) - lg:]
            out.append(c); continue
        touch = c.rd | c.wr
        nv = nl = None
        for n, regs in enumerate(vq):
            if regs & touch: nv = len(vq) - 1 - n
        for n, (k, regs) in enumerate(lq):
            if regs & touch:
                nl = len(lq) - 1 - n
                if any(kk != "ds" for kk, _ in lq): nl = 0
        if nv is not None or nl is not None:
            if not insert:
                raise ValueError(f"{name}: missing wait before: {c.text} (vm {nv}, lgkm {nl})")
            s = "s_waitcnt"
            if nv is not None:
                nv = min(nv, 63); s += f" vmcnt({nv})"; vq = vq[len(vq) - nv:] if nv else []
            if nl is not None:
                nl = min(nl, 15); s += f" lgkmcnt({nl})"; lq = lq[len(lq) - nl:] if nl else []
            out.append(Ins(s))
        out.append(c)
        if c.kind in ("vmem", "vmem_lds", "vstore"):
            vq.append(set(c.wr))
            if len(vq) > 63: raise ValueError(f"{name}: more than 63 vmem ops in flight at {c.text}")
        elif c.kind == "ds": lq.append(("ds", set(c.wr)))
        elif c.kind == "smem": lq.append(("smem", set(c.wr)))
    return out

class Asm:
    def __init__(self, name):
        self.name = name
        self.seq = []
    def __call__(self, text):
        for l in text.split("\n"):
            l = l.strip()
            if l: self.seq.append(Ins(l))
    def label(self, l, ok=False): self.seq.append(Ins(l + ":" + (" ; pend-ok" if ok else "")))
    def wait_vm(self, marker, extra=""):
        self(f"s_waitcnt vmcnt({self.vm_issued() - marker}){extra}")
    def vm_issued(self):
        return sum(1 for i in self.seq if i.kind in ("vmem", "vmem_lds", "vstore"))
    def finish(self):
        s = auto_waits(self.seq, True, self.name)
        s = fix_hazards(s)
        s = roll(s)
        check_edges(s)
        return s
    def iter(self, lab): self.seq.append(Ins(f"; @iter {lab}"))
    def back(self, lab): self.seq.append(Ins(f"s_nop 0"))
    def end(self, lab): self.seq.append(Ins(f"; @end {lab}"))

def roll(seq):
    out, n = [], 0
    while n < len(seq):
        t = seq[n].text
        if t.startswith("; @iter"):
            lab = t.split()[2]
            e = next(k for k in range(n, len(seq)) if seq[k].text == f"; @end {lab}")
            its, cur = [], None
            for i in seq[n:e]:
                if i.text == f"; @iter {lab}": cur = []; its.append(cur)
                else: cur.append(i)
            ref = [i.text for i in its[0]]
            for k, it in enumerate(its):
                tx = [i.text for i in it]
                if tx != ref:
                    d = next((j for j in range(min(len(tx), len(ref))) if tx[j] != ref[j]), None)
                    raise ValueError(f"loop {lab}: iteration {k} differs at {d}: {ref[d-2:d+2]} vs {tx[d-2:d+2]}")
            out.append(Ins(lab + ": ; pend-ok"))
            for i in its[0]:
                if i.text == f"s_nop 0 ; @back {lab}": out.append(Ins(f"s_cbranch_scc1 {lab} ; pend-ok"))
                else: out.append(i)
            assert out[-1].mn == "s_cbranch_scc1"
            n = e + 1
        else:
            out.append(seq[n]); n += 1
    return out

def render(seq):
    return "\n".join((i.text if (i.is_label or i.kind == "dir") else "    " + i.text) for i in seq)

def vr(a, n=1): return f"v{a}" if n == 1 else f"v[{a}:{a+n-1}]"
def sr(a, n=1): return f"s{a}" if n == 1 else f"s[{a}:{a+n-1}]"
```

```python
import struct, math
S, D, H, DH, F = 2048, 448, 16, 28, 1792
QF, KV, OF, HF, H1F = 0x000000, 0x200000, 0x600000, 0x800000, 0xA00000
WOF, W1F, W2F, ST, CS1, B1F = 0x1100000, 0x1180000, 0x1310000, 0x14A0000, 0x14E0000, 0x14E2000
WS_BYTES = 0x1500000
def f32(x): return struct.unpack("<I", struct.pack("<f", x))[0]
def hx(x): return f"0x{x & 0xffffffff:x}"
QSCALE = DH ** -0.5 * math.log2(math.e)
def srd(a, r, p, nbytes):
    a(f"s_mov_b32 s{r}, s{p}\ns_mov_b32 s{r+1}, s{p+1}\ns_mov_b32 s{r+2}, {hx(nbytes)}\ns_mov_b32 s{r+3}, 0x20000")
MF = "v_mfma_f32_32x32x16_bf16"

import os
PROF = bool(os.environ.get("PROF"))
PROFB = 0x1480000 + 0x100000 * 2
def stamp(a, i):
    if PROF: a(f"s_memtime s[{84+2*i}:{85+2*i}]")
def prof_begin(a):
    if PROF: a("s_memrealtime s[80:81]\ns_memtime s[84:85]")
def prof_end(a, kidx, sW, n):
    if not PROF: return
    a(f"""s_memtime s[{84+2*n}:{85+2*n}]
    s_memrealtime s[82:83]
    s_load_dwordx2 s[100:101], s[0:1], 80
    s_lshl_b32 s79, s2, 2
    s_add_u32 s79, s79, s{sW}
    s_add_u32 s79, s79, {kidx*1024}
    s_lshl_b32 s79, s79, 6
    s_add_u32 s79, s79, {hx(0x2000000)}
    s_waitcnt lgkmcnt(0)
    s_add_u32 s100, s100, s79
    s_addc_u32 s101, s101, 0
    v_mov_b32 v0, 0""")
    vals = [80, 82] + [84 + 2 * i for i in range(n + 1)]
    for j, s in enumerate(vals):
        a(f"v_mov_b32 v1, s{s}\nglobal_store_dword v0, v1, s[100:101] offset:{4*j}")
```

```python
import sys, importlib
from asmx import *
from common import *
NAME = "sequential_preLN__softmax_full_mha__dense_activation_gelu__prompt"
REF = f"cdna_kernels/{NAME}.s.ref"

def header():
    L = open(REF).read().split("\n")
    out = []
    for l in L:
        if l.startswith("; Override launch"): break
        out.append(l)
    return out

def build(kernels, path):
    out = header()
    for k in kernels:
        if k.get("launch", True):
            out.append(f"; @launch kernel={k['label']} grid=({k['grid']},1,1) block=({k['block']},1,1) lds={k['lds']}")
    out += ['.amdgcn_target "amdgcn-amd-amdhsa--gfx950"', ".text"]
    seen = set()
    first = True
    for k in kernels:
        if k["label"] in seen: continue
        seen.add(k["label"])
        out += [f".globl {k['label']}", ".p2align 8", f".type {k['label']},@function", f"{k['label']}:"]
        if first: out.append("code_begin:"); first = False
        out.append(render(k["asm"].finish()))
    out += ["code_end:", "    s_endpgm", ".fill 300, 4, 0xbf800000", "    s_endpgm"]
    out += ['.section .rodata,"a"']
    seen = set()
    for k in kernels:
        if k["label"] in seen: continue
        seen.add(k["label"])
        out += [".p2align 6", f".amdhsa_kernel {k['label']}",
                f"  .amdhsa_next_free_vgpr {k['vgpr']}",
                "  .amdhsa_next_free_sgpr 102",
                f"  .amdhsa_accum_offset {k['accum']}",
                "  .amdhsa_group_segment_fixed_size 0",
                "  .amdhsa_kernarg_size 88",
                "  .amdhsa_user_sgpr_count 2",
                "  .amdhsa_user_sgpr_kernarg_segment_ptr 1",
                "  .amdhsa_system_sgpr_workgroup_id_x 1",
                ".end_amdhsa_kernel"]
    open(path, "w").write("\n".join(out) + "\n")
```

```python
from asmx import *
from common import *

A_XB = 448 * 192
A_CS = A_XB + 65536
A_LDS = A_CS + 512

def code_prefetch(a, tag, sidx, vl16, vdst, stmp):
    a(f"""s_getpc_b64 s[{stmp}:{stmp+1}]""")
    a.label(f"pf_{tag}", ok=True)
    a(f"""s_min_u32 s{sidx}, s{sidx}, (code_end-code_begin)>>10
    s_lshl_b32 s{sidx}, s{sidx}, 10
    s_add_u32 s{sidx}, s{sidx}, 0x100000-(pf_{tag}-code_begin)
    s_add_u32 s{stmp}, s{stmp}, s{sidx}
    s_addc_u32 s{stmp+1}, s{stmp+1}, 0
    s_sub_u32 s{stmp}, s{stmp}, 0x100000
    s_subb_u32 s{stmp+1}, s{stmp+1}, 0
    global_load_dwordx4 v[{vdst}:{vdst+3}], v{vl16}, s[{stmp}:{stmp+1}]""")

def kernel_A():
    a = Asm("A")
    sW, sTB, sJ = 3, 4, 5
    X, W, WS, RL = 8, 12, 16, 20
    MK = [24, 26, 28]
    sWo, sLm, sXm, sMask = 31, 32, 33, 34
    sXq = [52, 53, 54, 55]
    sSl = [56, 57, 58]
    sB, sRLd, sRLs, sRS, sKS = 60, 61, 62, 63, 64
    T = 66
    vL16, vX0, vX1 = 1, 2, 3
    vWg = [4, 5, 6]
    vXr = [8, 9, 10, 11]
    vWr = [12, 13, 14]
    vLin, vRL0, vRL3, vTr = 15, 16, 17, 18
    vQ = [20, 21, 22, 23]
    vT = 24
    ONES = 32
    XF = [36, 40]
    WF = [[44, 48, 52], [56, 60, 64]]
    ACC = [68, 84, 100]
    CSA = 116
    LAND = 132
    RLD = 180
    PK = 196
    RLO = 220
    PF = 236
    VO = 240

    a(f"""s_cmp_ge_u32 s2, 256
    s_cbranch_scc1 A_end""")
    prof_begin(a)
    a(f"""s_load_dwordx4 s[36:39], s[0:1], 0
    s_load_dwordx2 s[40:41], s[0:1], 16
    s_load_dwordx2 s[42:43], s[0:1], 32
    s_load_dwordx2 s[44:45], s[0:1], 48
    s_load_dwordx2 s[46:47], s[0:1], 80
    v_lshrrev_b32 v{vT}, 6, v0
    v_mov_b32 v{vT+7}, v0
    v_and_b32 v0, 63, v0
    v_readfirstlane_b32 s{sW}, v{vT}
    v_lshlrev_b32 v{vL16}, 4, v0
    s_lshr_b32 s{T}, s2, 3
    s_lshl_b32 s{T+1}, s{T}, 2
    s_add_u32 s{T+1}, s{T+1}, s{sW}""")
    code_prefetch(a, "A", T + 1, vL16, PF, T + 2)
    a(f"""s_and_b32 s{T+1}, s2, 6
    s_lshl_b32 s{T+1}, s{T+1}, 1
    s_and_b32 s{sTB}, s{T}, 3
    s_add_u32 s{sTB}, s{sTB}, s{T+1}
    s_and_b32 s{T+1}, s2, 1
    s_lshl_b32 s{T+1}, s{T+1}, 3
    s_lshr_b32 s{sJ}, s{T}, 2
    s_add_u32 s{sJ}, s{sJ}, s{T+1}
    v_lshrrev_b32 v{vT}, 3, v0
    v_lshrrev_b32 v{vT+1}, 4, v0
    v_xor_b32 v{vT+1}, v0, v{vT+1}
    v_and_b32 v{vT+1}, 7, v{vT+1}
    v_lshlrev_b32 v{vT+1}, 4, v{vT+1}
    v_mul_u32_u24 v{vT}, 896, v{vT}
    v_add_u32 v{vX0}, v{vT}, v{vT+1}
    v_xor_b32 v{vX1}, 64, v{vX0}
    s_lshl_b32 s{T}, s{sTB}, 2
    s_add_u32 s{T}, s{T}, s{sW}
    s_mul_i32 s{sXq[0]}, s{T}, {32*896}
    s_add_u32 s{sXq[1]}, s{sXq[0]}, {8*896}
    s_add_u32 s{sXq[2]}, s{sXq[0]}, {16*896}
    s_add_u32 s{sXq[3]}, s{sXq[0]}, {24*896}
    s_lshl_b32 s{sXm}, s{sW}, 14
    s_add_u32 s{sXm}, s{sXm}, {A_XB}
    v_add_u32 v{vLin}, s{sXm}, v{vL16}
    s_mov_b32 s{X+2}, {hx(S*D*2)}
    s_mov_b32 s{X+3}, 0x20000
    s_mov_b32 s{W+2}, {hx(D*3*D*2)}
    s_mov_b32 s{W+3}, 0x20000
    s_waitcnt lgkmcnt(0)
    s_mov_b32 s{X}, s36
    s_mov_b32 s{X+1}, s37""")
    marks = []
    def x_loads(c):
        for q in range(4):
            va = vX0 if q % 2 == 0 else vX1
            if c < 4:
                a(f"""s_mov_b32 m0, s{sXm}
                s_add_u32 s{sXm}, s{sXm}, 1024
                buffer_load_dwordx4 v{va}, s[{X}:{X+3}], s{sXq[q]} offen lds""")
            else:
                r = LAND + 16 * (c - 4) + 4 * q
                a(f"buffer_load_dwordx4 v[{r}:{r+3}], v{va}, s[{X}:{X+3}], s{sXq[q]} offen offset:{128*(c-4)}")
        if c < 4:
            a(f"v_add_u32 v{vX0}, 128, v{vX0}\nv_add_u32 v{vX1}, 128, v{vX1}")
    def w_loads(c):
        for ph in range(3):
            a(f"""s_mov_b64 exec, s[{MK[ph]}:{MK[ph]+1}]
            s_mov_b32 m0, s{sLm}
            s_add_u32 s{sLm}, s{sLm}, {1024 if ph < 2 else 1024 + 9216}
            buffer_load_dwordx4 v{vWg[ph]}, s[{W}:{W+3}], s{sWo} offen lds""")
        a(f"s_mov_b64 exec, -1\ns_add_u32 s{sWo}, s{sWo}, {64*2688}")
    x_loads(0)
    a(f"""s_mov_b32 s{W}, s38
    s_mov_b32 s{W+1}, s39
    s_movk_i32 s{T}, 2496
    s_mul_i32 s{sWo}, s{sJ}, 168
    s_and_b32 s{sWo}, s{sWo}, -16
    s_mul_i32 s{T+1}, s{sW}, {16*2688}
    s_add_u32 s{sWo}, s{sWo}, s{T+1}
    s_mul_i32 s{sLm}, s{sW}, 3072""")
    for ph in range(3):
        a(f"""v_add_u32 v{vT}, {64*ph}, v0
        v_mul_u32_u24 v{vT+1}, 43691, v{vT}
        v_lshrrev_b32 v{vT+1}, 19, v{vT+1}
        v_mad_i32_i24 v{vT+2}, v{vT+1}, -12, v{vT}
        v_lshlrev_b32 v{vT}, 4, v{vT}
        v_cmp_ne_u32 s[{MK[ph]}:{MK[ph]+1}], 11, v{vT+2}
        v_mad_u32_u24 v{vWg[ph]}, v{vT+1}, s{T}, v{vT}""")
    a("s_nop 3")
    w_loads(0); marks.append(a.vm_issued())
    for c in range(1, 7):
        x_loads(c); w_loads(c); marks.append(a.vm_issued())
    a(f"""s_lshl_b32 s{sB}, s2, 2
    s_add_u32 s{sB}, s{sB}, s{sW}
    s_min_u32 s{T}, s{sB}, 895
    s_mov_b32 s{RL+2}, {hx(D*D*2)}
    s_movk_i32 s{sRS}, 896
    s_movk_i32 s{T+2}, 9363
    s_mov_b32 s{sRLd}, {hx(WOF)}
    s_cmp_ge_u32 s{T}, 112
    s_cselect_b32 s{T+1}, 112, 0
    s_cselect_b32 s{RL}, s42, s40
    s_cselect_b32 s{RL+1}, s43, s41
    s_cselect_b32 s{RL+2}, {hx(D*F*2)}, s{RL+2}
    s_cselect_b32 s{sRS}, 3584, s{sRS}
    s_cselect_b32 s{sKS}, 28, 32
    s_cselect_b32 s{T+2}, 2341, s{T+2}
    s_cselect_b32 s{T+3}, 28, 7
    s_cselect_b32 s{T+4}, 32, 28
    s_cselect_b32 s{sRLd}, {hx(W1F)}, s{sRLd}
    s_cmp_ge_u32 s{T}, 504
    s_cselect_b32 s{T+1}, 504, s{T+1}
    s_cselect_b32 s{RL}, s44, s{RL}
    s_cselect_b32 s{RL+1}, s45, s{RL+1}
    s_cselect_b32 s{sRS}, 896, s{sRS}
    s_cselect_b32 s{sKS}, 112, s{sKS}
    s_cselect_b32 s{T+2}, 9363, s{T+2}
    s_cselect_b32 s{T+3}, 7, s{T+3}
    s_cselect_b32 s{sRLd}, {hx(W2F)}, s{sRLd}
    s_mov_b32 s{RL+3}, 0x20000
    s_sub_u32 s{T}, s{T}, s{T+1}
    s_mul_i32 s{T+2}, s{T}, s{T+2}
    s_lshr_b32 s{T+2}, s{T+2}, 16          ; kb
    s_mul_i32 s{T+3}, s{T+2}, s{T+3}
    s_sub_u32 s{T+3}, s{T}, s{T+3}         ; cp
    s_mul_i32 s{T+5}, s{T+2}, s{T+4}
    s_mul_i32 s{sRLs}, s{T+5}, s{sRS}
    s_lshl_b32 s{T+5}, s{T+3}, 7
    s_add_u32 s{sRLs}, s{sRLs}, s{T+5}
    s_mul_i32 s{T+5}, s{T+3}, s{sKS}
    s_add_u32 s{T+5}, s{T+5}, s{T+2}
    s_lshl_b32 s{T+5}, s{T+5}, 11
    s_add_u32 s{sRLd}, s{sRLd}, s{T+5}
    v_lshrrev_b32 v{vT}, 3, v0
    v_and_b32 v{vT+1}, 7, v0
    v_lshlrev_b32 v{vT+1}, 4, v{vT+1}
    v_mad_u32_u24 v{vRL0}, v{vT}, s{sRS}, v{vT+1}
    v_mov_b32 v{vRL3}, v{vRL0}
    s_cmp_eq_u32 s{T+4}, 28
    s_cselect_b32 exec_lo, 0, -1
    s_cselect_b32 s{T+6}, 0x7fff0000, 0
    v_or_b32 v{vRL3}, s{T+6}, v{vRL3}
    s_mov_b32 exec_lo, -1
    s_lshl_b32 s{T+5}, s{sRS}, 3""")
    for q in range(4):
        a(f"buffer_load_dwordx4 v[{RLD+4*q}:{RLD+4*q+3}], v{vRL3 if q == 3 else vRL0}, s[{RL}:{RL+3}], s{sRLs} offen")
        if q < 3: a(f"s_add_u32 s{sRLs}, s{sRLs}, s{T+5}")
    srd(a, WS, 46, WS_BYTES)
    a(f"""v_mul_u32_u24 v{vT}, 192, v{vT+7}
    v_add_u32 v{vT+1}, 256, v{vT+7}
    v_min_u32 v{vT+1}, 447, v{vT+1}
    v_mul_u32_u24 v{vT+1}, 192, v{vT+1}
    v_mov_b32 v{vT+2}, 0x3f80
    v_mov_b32 v{vT+3}, 0
    ds_write_b64 v{vT}, v[{vT+2}:{vT+3}] offset:176
    ds_write_b64 v{vT+1}, v[{vT+2}:{vT+3}] offset:176
    s_mov_b32 s{sMask}, 0xffff0000
    s_cmp_eq_u32 s{sW}, 3
    s_cselect_b32 s{sSl[0]}, 0, s{sW}
    s_add_u32 s{sSl[1]}, s{sSl[0]}, 1
    s_cmp_eq_u32 s{sSl[1]}, 3
    s_cselect_b32 s{sSl[1]}, 0, s{sSl[1]}
    s_add_u32 s{sSl[2]}, s{sSl[1]}, 1
    s_cmp_eq_u32 s{sSl[2]}, 3
    s_cselect_b32 s{sSl[2]}, 0, s{sSl[2]}
    s_lshl_b32 s{T}, s{sW}, 14
    s_add_u32 s{T}, s{T}, {A_XB}
    v_and_b32 v{vT}, 31, v0                 ; t
    v_lshrrev_b32 v{vT+1}, 5, v0            ; hh
    v_bfe_u32 v{vT+2}, v0, 1, 3             ; (t>>1)&7
    v_xor_b32 v{vT+2}, v{vT+2}, v{vT+1}
    v_lshlrev_b32 v{vT}, 7, v{vT}
    v_add_u32 v{vT}, s{T}, v{vT}""")
    for i in range(4):
        a(f"""v_xor_b32 v{vT+3}, {2*i}, v{vT+2}
        v_lshl_add_u32 v{vXr[i]}, v{vT+3}, 4, v{vT}""")
    a(f"""v_bfe_u32 v{vT}, v0, 2, 2               ; r
    v_lshl_add_u32 v{vT+2}, v{vT+1}, 3, v{vT}    ; 8hh + r
    v_mul_u32_u24 v{vT+2}, 192, v{vT+2}
    v_and_b32 v{vT+3}, 3, v0
    v_lshlrev_b32 v{vT+3}, 3, v{vT+3}
    v_and_b32 v{vT+4}, 16, v0
    v_lshl_add_u32 v{vT+3}, v{vT+4}, 1, v{vT+3}  ; 32cg + 8c4
    v_lshl_add_u32 v{vT+5}, v{vT+1}, 2, v{vT}    ; 4hh + r
    v_cmp_eq_u32 vcc, 56, v{vT+3}
    v_add_u32 v{vT+6}, 176, v{vT+2}
    v_add_u32 v{vT+2}, v{vT+2}, v{vT+3}
    v_lshl_add_u32 v{vTr}, v{vT+5}, 7, v{vT+3}
    v_add_u32 v{vTr}, s{T}, v{vTr}
    s_and_b32 s{T+1}, s{sJ}, 1
    s_lshl_b32 s{T+1}, s{T+1}, 3""")
    for s_ in range(3):
        a(f"""s_mul_i32 s{T+2}, s{sSl[s_]}, 56
        s_add_u32 s{T+2}, s{T+2}, s{T+1}
        v_add_u32 v{vWr[s_]}, s{T+2}, v{vT+2}
        v_cndmask_b32 v{vWr[s_]}, v{vWr[s_]}, v{vT+6}, vcc""")
    for i in range(4):
        a(f"v_mov_b32 v{ONES+i}, 0x3f803f80\nv_mov_b32 v{vQ[i]}, 0")

    def reads(s):
        c, i = divmod(s, 4)
        b = s & 1
        so = (s if s < 16 else s - 16) * 3072
        r = [f"ds_read_b128 v[{XF[b]}:{XF[b]+3}], v{vXr[i]} offset:{(c % 4) * 4096}"]
        for sl in range(3):
            for p in range(2):
                d = WF[b][sl] + 2 * p
                r.append(f"ds_read_b64_tr_b16 v[{d}:{d+1}], v{vWr[sl]} offset:{so + 768 * p}")
        return r
    def chunk_ready(c):
        a.wait_vm(marks[c], " lgkmcnt(0)" if c == 0 else "")
        if c >= 4:
            for q in range(4):
                r = LAND + 16 * (c - 4) + 4 * q
                a(f"ds_write_b128 v{vLin}, v[{r}:{r+3}] offset:{(c - 4) * 4096 + q * 1024}")
        a("s_barrier")
    stamp(a, 1)
    chunk_ready(0)
    stamp(a, 2)
    for l in reads(0): a(l)
    for s in range(28):
        b = s & 1
        nxt = []
        if s + 1 < 28:
            if (s + 1) % 4 == 0: chunk_ready((s + 1) // 4)
            if s + 1 == 16:
                for sl in range(3): a(f"v_add_u32 v{vWr[sl]}, 49152, v{vWr[sl]}")
            nxt = reads(s + 1)
        val = []
        for d in range(4):
            x = XF[b] + d
            val += [f"v_lshlrev_b32 v{vT+2*(d&1)}, 16, v{x}", f"v_and_b32 v{vT+2*(d&1)+1}, s{sMask}, v{x}",
                    f"v_fmac_f32 v{vQ[2*(d&1)]}, v{vT+2*(d&1)}, v{vT+2*(d&1)}",
                    f"v_fmac_f32 v{vQ[2*(d&1)+1]}, v{vT+2*(d&1)+1}, v{vT+2*(d&1)+1}"]
        cin = lambda r: "0" if s == 0 else f"v[{r}:{r+15}]"
        mf = [f"{MF} v[{ACC[sl]}:{ACC[sl]+15}], v[{WF[b][sl]}:{WF[b][sl]+3}], v[{XF[b]}:{XF[b]+3}], {cin(ACC[sl])}" for sl in range(3)]
        mf.append(f"{MF} v[{CSA}:{CSA+15}], v[{ONES}:{ONES+3}], v[{WF[b][0]}:{WF[b][0]+3}], {cin(CSA)}")
        for m in range(4):
            a(mf[m])
            for l in nxt[2*m:2*m+2]: a(l)
            for l in val[4*m:4*m+4]: a(l)
    stamp(a, 3)
    a("s_waitcnt vmcnt(0)")
    stamp(a, 4)
    for q in range(4):
        a(f"ds_write_b128 v{vLin}, v[{RLD+4*q}:{RLD+4*q+3}] offset:{3*4096 + q*1024}")
    a(f"""v_add_f32 v{vQ[0]}, v{vQ[0]}, v{vQ[1]}
    v_add_f32 v{vQ[2]}, v{vQ[2]}, v{vQ[3]}
    v_and_b32 v{vT}, 31, v0
    v_lshlrev_b32 v{vT}, 2, v{vT}
    s_lshl_b32 s{T}, s{sSl[0]}, 7
    s_add_u32 s{T}, s{T}, {A_CS}
    v_add_f32 v{vQ[0]}, v{vQ[0]}, v{vQ[2]}
    v_add_u32 v{vT}, s{T}, v{vT}
    v_mov_b32 v{vQ[1]}, v{vQ[0]}""")
    for c in range(2):
        for s_ in range(2):
            for p in range(2):
                d = RLO + 8 * c + 4 * s_ + 2 * p
                a(f"ds_read_b64_tr_b16 v[{d}:{d+1}], v{vTr} offset:{3*4096 + (16*s_ + 8*p)*128 + 64*c}")
    a(f"""ds_write_b32 v{vT}, v{CSA}
    v_permlane32_swap_b32 v{vQ[0]}, v{vQ[1]}
    v_mov_b32 v{vQ[2]}, v{ACC[0]+12}
    v_mov_b32 v{vQ[3]}, v{ACC[0]+12}
    s_waitcnt lgkmcnt(0)
    s_barrier""")
    a(f"""v_lshrrev_b32 v{vT+1}, 5, v0
    v_lshlrev_b32 v{vT+1}, 4, v{vT+1}""")
    for sl in range(3):
        a(f"""s_lshl_b32 s{T}, s{sSl[sl]}, 7
        s_add_u32 s{T}, s{T}, {A_CS}
        v_add_u32 v{vT+2}, s{T}, v{vT+1}""")
        for g in range(4):
            d = LAND + 16 * sl + 4 * g
            a(f"ds_read_b128 v[{d}:{d+3}], v{vT+2} offset:{32*g}")
    a(f"""v_permlane32_swap_b32 v{vQ[2]}, v{vQ[3]}
    v_add_f32 v{vQ[0]}, v{vQ[0]}, v{vQ[1]}
    s_cmp_ge_u32 s{sB}, 896
    s_cbranch_scc1 A_norl ; pend-ok""")
    a(f"s_lshl_b32 s{T}, s{sKS}, 10\ns_add_u32 s{T}, s{T}, s{sRLd}")
    for c in range(2):
        for s_ in range(2):
            d = RLO + 8 * c + 4 * s_
            a(f"buffer_store_dwordx4 v[{d}:{d+3}], v{vL16}, s[{WS}:{WS+3}], s{sRLd if c == 0 else T} offen offset:{1024*s_}")
    a.label("A_norl", ok=True)
    NM, RS_, RS2 = vT + 2, vT + 4, vT + 6
    a(f"""v_mul_f32 v{NM}, {hx(f32(-1.0/D))}, v{vQ[3]}          ; -mean
    v_mul_f32 v{vQ[0]}, {hx(f32(1.0/D))}, v{vQ[0]}
    v_fma_f32 v{vQ[0]}, -v{NM}, v{NM}, v{vQ[0]}
    v_max_f32 v{vQ[0]}, 0, v{vQ[0]}
    v_add_f32 v{vQ[0]}, {hx(f32(1e-5))}, v{vQ[0]}
    v_rsq_f32 v{RS_}, v{vQ[0]}
    s_lshl_b32 s{T+8}, s{sTB}, 2
    s_add_u32 s{T+8}, s{T+8}, s{sW}
    s_mul_i32 s{T+9}, s{sJ}, 3
    v_and_b32 v{vT}, 31, v0
    v_lshlrev_b32 v{vT}, 7, v{vT}
    v_lshrrev_b32 v{vT+1}, 5, v0
    v_lshl_add_u32 v{vT}, v{vT+1}, 3, v{vT}
    s_lshl_b32 s{T}, s{sW}, 14
    s_add_u32 s{T}, s{T}, {A_XB}
    v_add_u32 v{vT}, s{T}, v{vT}
    s_waitcnt lgkmcnt(0)""")
    for sl in range(3):
        P = PK + 8 * sl
        a(f"""s_add_u32 s{T}, s{T+9}, s{sSl[sl]}
        s_lshr_b32 s{T+1}, s{T}, 4              ; type
        s_and_b32 s{T}, s{T}, 15                ; head
        s_lshl_b32 s{T}, s{T}, 6
        s_add_u32 s{T}, s{T}, s{T+8}
        s_lshl_b32 s{T+2}, s{T}, 11
        s_lshl_b32 s{T+3}, s{T}, 12
        s_lshl_b32 s{T+4}, s{T+1}, 11
        s_add_u32 s{T+3}, s{T+3}, s{T+4}
        s_add_u32 s{T+3}, s{T+3}, {hx(KV - 2048)}
        s_cmp_eq_u32 s{T+1}, 0
        s_cselect_b32 s{T+2}, s{T+2}, s{T+3}
        s_cselect_b32 s{T+4}, {hx(f32(QSCALE))}, 1.0
        v_mul_f32 v{RS2}, s{T+4}, v{RS_}""")
        for r in range(0, 16, 2):
            c = LAND + 16 * sl + r; x = ACC[sl] + r
            a(f"v_pk_fma_f32 v[{x}:{x+1}], v[{c}:{c+1}], v[{NM}:{NM+1}], v[{x}:{x+1}] op_sel_hi:[1,0,1]")
        for r in range(0, 16, 2):
            x = ACC[sl] + r
            a(f"v_pk_mul_f32 v[{x}:{x+1}], v[{x}:{x+1}], v[{RS2}:{RS2+1}] op_sel_hi:[1,0]")
        for r in range(8):
            a(f"v_cvt_pk_bf16_f32 v{P+r}, v{ACC[sl]+2*r}, v{ACC[sl]+2*r+1}")
        a(f"""s_cmp_eq_u32 s{T+1}, 2
        s_cselect_b32 s{T+4}, 0x3f80, 0
        s_mov_b32 exec_lo, 0
        v_mov_b32 v{P+6}, s{T+4}
        v_mov_b32 v{P+7}, 0
        s_mov_b32 exec_lo, -1
        s_cbranch_scc0 A_st{sl}""")
        for g in range(4):
            a(f"ds_write_b64 v{vT}, v[{P+2*g}:{P+2*g+1}] offset:{16*g}")
        for f in range(2):
            for p in range(2):
                d = P + 4 * f + 2 * p
                a(f"ds_read_b64_tr_b16 v[{d}:{d+1}], v{vTr} offset:{(16*f + 8*p)*128}")
        a("s_waitcnt lgkmcnt(0)")
        a.label(f"A_st{sl}")
        for f in range(2):
            a(f"buffer_store_dwordx4 v[{P+4*f}:{P+4*f+3}], v{vL16}, s[{WS}:{WS+3}], s{T+2} offen offset:{1024*f}")
    if PROF: a("s_waitcnt vmcnt(0)")
    prof_end(a, 0, sW, 5)
    a.label("A_end", ok=True)
    a("s_endpgm")
    return a
```

```python
from asmx import *
from common import *

B_LDS = 16384

def kernel_B():
    a = Asm("B")
    sW, WS = 3, 8
    sK, sV, sQ, sO, sCnt, sHead = 20, 21, 22, 23, 24, 25
    T = 30
    vL16, vLW, vLR = 1, 2, 3
    Q = [8, 16]
    R = 4
    RING = 24
    SR = [88, 104]
    E = 120
    P = [136, 144]
    O = [152, 168]
    vT = 184
    NT = 32
    def Kf(u, f): return RING + 16 * (u % R) + 4 * f
    def Vf(u, f): return RING + 16 * (u % R) + 8 + 4 * f
    def ldK(u):
        r = [f"buffer_load_dwordx4 v[{Kf(u,f)}:{Kf(u,f)+3}], v{vL16}, s[{WS}:{WS+3}], s{sK} offen offset:{1024*f}" for f in range(2)]
        return r + [f"s_add_u32 s{sK}, s{sK}, 4096"]
    def ldV(u):
        r = [f"buffer_load_dwordx4 v[{Vf(u,f)}:{Vf(u,f)+3}], v{vL16}, s[{WS}:{WS+3}], s{sV} offen offset:{2048+1024*f}" for f in range(2)]
        return r + [f"s_add_u32 s{sV}, s{sV}, 4096"]
    a(f"""s_cmp_ge_u32 s2, 256
    s_cbranch_scc1 B_end""")
    prof_begin(a)
    a(f"""    s_load_dwordx2 s[4:5], s[0:1], 80
    v_lshrrev_b32 v{vT}, 6, v0
    v_and_b32 v0, 63, v0
    v_readfirstlane_b32 s{sW}, v{vT}
    v_lshlrev_b32 v{vL16}, 4, v0
    s_and_b32 s{T}, s2, 7
    s_lshl_b32 s{T}, s{T}, 1
    s_lshr_b32 s{T+1}, s2, 7
    s_add_u32 s{sHead}, s{T}, s{T+1}          ; head
    s_bfe_u32 s{T+1}, s2, 0x40003             ; q block
    s_lshr_b32 s{T+2}, s{sW}, 1
    s_lshl_b32 s{T+3}, s{sHead}, 6
    s_lshl_b32 s{T+4}, s{T+2}, 5
    s_add_u32 s{T+4}, s{T+4}, s{T+3}
    s_lshl_b32 s{sK}, s{T+4}, 12
    s_add_u32 s{sK}, s{sK}, {hx(KV)}
    s_mov_b32 s{sV}, s{sK}
    s_lshl_b32 s{T+1}, s{T+1}, 2
    s_and_b32 s{T+4}, s{sW}, 1
    s_lshl_b32 s{T+4}, s{T+4}, 1
    s_add_u32 s{T+1}, s{T+1}, s{T+4}
    s_add_u32 s{T+1}, s{T+1}, s{T+2}
    s_add_u32 s{T+4}, s{T+1}, s{T+3}
    s_lshl_b32 s{sQ}, s{T+4}, 11
    s_xor_b32 s{T+5}, s{sQ}, 2048
    s_lshl_b32 s{sO}, s{T+1}, 4
    s_add_u32 s{sO}, s{sO}, s{sHead}
    s_lshl_b32 s{sO}, s{sO}, 11
    s_add_u32 s{sO}, s{sO}, {hx(OF)}
    s_mov_b32 s{WS+2}, {hx(WS_BYTES)}
    s_mov_b32 s{WS+3}, 0x20000
    s_waitcnt lgkmcnt(0)
    s_mov_b32 s{WS}, s4
    s_mov_b32 s{WS+1}, s5""")
    for l in ldK(0): a(l)
    for t in range(2):
        for f in range(2):
            a(f"buffer_load_dwordx4 v[{Q[t]+4*f}:{Q[t]+4*f+3}], v{vL16}, s[{WS}:{WS+3}], s{T+5 if t == 0 else sQ} offen offset:{1024*f}")
    for u in range(1, R):
        for l in ldK(u) + ldV(u - 1): a(l)
    a(f"""s_lshl_b32 s{T}, s{sW}, 12
    v_add_u32 v{vLW}, s{T}, v{vL16}
    v_xor_b32 v{vLR}, 0x2000, v{vLW}
    s_mov_b32 s{sCnt}, 7""")
    for r in range(16): a(f"v_mov_b32 v{O[1]+r}, 0")
    def Smf(t, u, f):
        c = "0" if f == 0 else f"v[{SR[t]}:{SR[t]+15}]"
        return f"{MF} v[{SR[t]}:{SR[t]+15}], v[{Kf(u,f)}:{Kf(u,f)+3}], v[{Q[t]+4*f}:{Q[t]+4*f+3}], {c}"
    def PVmf(t, u, f):
        c = "0" if (u == 0 and f == 0 and t == 0) else f"v[{O[t]}:{O[t]+15}]"
        return f"{MF} v[{O[t]}:{O[t]+15}], v[{Vf(u,f)}:{Vf(u,f)+3}], v[{P[t]+4*f}:{P[t]+4*f+3}], {c}"
    def cvt(t, r): return f"v_cvt_pk_bf16_f32 v{P[t]+r}, v{E+2*r}, v{E+2*r+1}"
    def phase(t, mfs, extra, carry):
        for m in range(4):
            if mfs[m]: a(mfs[m])
            for i in range(4): a(f"v_exp_f32 v{E+4*m+i}, v{SR[t]+4*m+i}")
            for l in (carry if m == 0 else [cvt(t, 2*m-2), cvt(t, 2*m-1)]): a(l)
            for l in extra[m]: a(l)
        return [cvt(t, 6), cvt(t, 7)]
    a(Smf(0, 0, 0)); a(Smf(0, 0, 1))
    stamp(a, 1)
    carry = []
    for u in range(NT):
        if 1 <= u <= 28 and (u - 1) % 4 == 0: a.iter("B_loop")
        ex = [[], [], [], []]
        if u <= 28:
            ex[1] = ldK(u + R); ex[3] = ldV(u + R - 1)
        pv = [PVmf(1, u - 1, 0), PVmf(1, u - 1, 1)] if u else [None, None]
        carry = phase(0, [Smf(1, u, 0), Smf(1, u, 1)] + pv, ex, carry)
        ex = [[], [], [], []]
        if u <= 28: a(f"s_waitcnt vmcnt({4*R-4})")
        if u + 1 < NT:
            carry = phase(1, [Smf(0, u + 1, 0), Smf(0, u + 1, 1), PVmf(0, u, 0), PVmf(0, u, 1)], ex, carry)
        else:
            h = NT // 2
            ex[3] = [f"ds_write_b128 v{vLW}, v[{O[0]+4*g}:{O[0]+4*g+3}] offset:{1024*g}" for g in range(4)]
            carry = phase(1, [PVmf(0, u, 0), PVmf(0, u, 1), None, None], ex, carry)
        if 1 <= u <= 28 and (u - 1) % 4 == 3:
            a(f"s_sub_u32 s{sCnt}, s{sCnt}, 1\ns_cmp_lg_u32 s{sCnt}, 0")
            a.back("B_loop")
            if u == 28: a.end("B_loop")
    stamp(a, 2)
    a(PVmf(1, NT - 1, 0))
    for l in carry: a(l)
    a(PVmf(1, NT - 1, 1))
    a("s_waitcnt lgkmcnt(0)\ns_barrier")
    for g in range(4):
        a(f"ds_read_b128 v[{SR[0]+4*g}:{SR[0]+4*g+3}], v{vLR} offset:{1024*g}")
    a(f"v_mov_b32 v{vT}, 0\nv_mov_b32 v{vT+1}, 0\nv_mov_b32 v{vT+2}, 0\nv_mov_b32 v{vT+3}, 0")
    a(f"s_mov_b32 s{T}, {hx(f32(2.0**-60))}\ns_mov_b32 s{T+1}, {hx(f32(2.0**60))}")
    o = O[1]
    for r in (12, 14, 0, 2, 4, 6, 8, 10):
        a(f"v_pk_add_f32 v[{o+r}:{o+r+1}], v[{o+r}:{o+r+1}], v[{SR[0]+r}:{SR[0]+r+1}]")
    a(f"""v_mov_b32 v{vT+4}, v{o+12}
    v_mov_b32 v{vT+5}, v{o+12}""")
    for r in range(0, 16, 2):
        a(f"v_pk_fma_f32 v[{vT+2}:{vT+3}], v[{o+r}:{o+r+1}], v[{vT}:{vT+1}], v[{vT+2}:{vT+3}]")
        if r == 2: a(f"v_permlane32_swap_b32 v{vT+4}, v{vT+5}")
        if r == 6: a(f"v_rcp_f32 v{vT+6}, v{vT+5}")
    a(f"""v_add_f32 v{vT+2}, v{vT+2}, v{vT+3}
    v_add_f32 v{vT+2}, v{vT+2}, v{vT+5}
    v_cmp_le_f32 vcc, s{T}, v{vT+2}
    v_cmp_ge_f32 s[{T+2}:{T+3}], s{T+1}, v{vT+2}""")
    def scale_store(pre=None):
        for r in range(0, 16, 2):
            a(f"v_pk_mul_f32 v[{o+r}:{o+r+1}], v[{o+r}:{o+r+1}], v[{vT+6}:{vT+7}] op_sel_hi:[1,0]")
        if pre: a(pre)
        for r in range(8):
            a(f"v_cvt_pk_bf16_f32 v{P[0]+r}, v{o+2*r}, v{o+2*r+1}")
        for f in range(2):
            a(f"buffer_store_dwordx4 v[{P[0]+4*f}:{P[0]+4*f+3}], v{vL16}, s[{WS}:{WS+3}], s{sO} offen offset:{1024*f}")
    scale_store(f"""s_and_b64 vcc, vcc, s[{T+2}:{T+3}]
    s_cmp_eq_u64 vcc, -1
    s_cbranch_scc0 B_slow ; pend-ok""")
    if PROF: a("s_waitcnt vmcnt(0)")
    prof_end(a, 1, sW, 3)
    a.label("B_end", ok=True)
    a("s_endpgm")
    a.label("B_slow", ok=True)
    M, AL = vT, vT + 2
    a(f"""s_waitcnt vmcnt(0)
    s_lshl_b32 s{sK}, s{sHead}, 18
    s_add_u32 s{sK}, s{sK}, {hx(KV)}
    s_mov_b32 s{sV}, s{sK}
    s_mov_b32 s{sCnt}, 64
    v_mov_b32 v{M}, 0xff7fffff""")
    for r in range(16): a(f"v_mov_b32 v{o+r}, 0")
    a.label("B_slow_loop")
    for l in ldK(0) + ldV(0): a(l)
    a("s_waitcnt vmcnt(0)")
    a(Smf(1, 0, 0)); a(Smf(1, 0, 1))
    s = SR[1]
    a(f"v_max3_f32 v{M+1}, v{s}, v{s+1}, v{M}")
    for r in range(2, 16, 2): a(f"v_max3_f32 v{M+1}, v{s+r}, v{s+r+1}, v{M+1}")
    a(f"""v_mov_b32 v{AL}, v{M+1}
    s_nop 1
    v_permlane32_swap_b32 v{AL}, v{M+1}
    v_max_f32 v{M+1}, v{AL}, v{M+1}
    v_sub_f32 v{AL}, v{M}, v{M+1}
    v_exp_f32 v{AL}, v{AL}
    v_mov_b32 v{M}, v{M+1}""")
    for r in range(16): a(f"v_sub_f32 v{s+r}, v{s+r}, v{M}")
    for r in range(16): a(f"v_exp_f32 v{E+r}, v{s+r}")
    for r in range(16): a(f"v_mul_f32 v{o+r}, v{o+r}, v{AL}")
    for r in range(8): a(cvt(1, r))
    a(PVmf(1, 4, 0)); a(PVmf(1, 4, 1))
    a(f"""s_nop 15
    s_sub_u32 s{sCnt}, s{sCnt}, 1
    s_cmp_lg_u32 s{sCnt}, 0
    s_cbranch_scc1 B_slow_loop
    v_mov_b32 v{vT+4}, v{o+12}
    v_mov_b32 v{vT+5}, v{o+12}
    v_permlane32_swap_b32 v{vT+4}, v{vT+5}
    v_rcp_f32 v{vT+6}, v{vT+5}""")
    scale_store()
    a("s_endpgm")
    return a
```

```python
from asmx import *
from common import *

def lds_need(n, ring): return 4 * ring * 1024 + 16384

def kernel_CE(which):
    isC = which == "C"
    a = Asm(which)
    n = 16 if isC else 56
    CH = 4 if isC else 7
    RING = 16 if isC else 35
    NCH = n // CH
    RCH = RING // CH
    KS = 2 * n
    RS = RING * 1024
    RED = 4 * RS
    WB, AB = (WOF, OF) if isC else (W2F, H1F)
    sW, WS, XS = 3, 8, 12
    sWo, sAo, sLm, sTT, sCT, sMask = 20, 21, 22, 23, 24, 25
    T = 30
    vL16, vR0, vR1, vRW, vRR, vXo = 1, 2, 3, 4, 5, 6
    vT = 8
    XR = 24
    BR = 32
    FB = [[40, 44], [48, 52], [56, 60], [64, 68]]
    ACC = [72, 88]
    PR = 104
    L = which
    a(f"""s_cmp_ge_u32 s2, {256 if isC else 224}
    s_cbranch_scc1 {L}_end""")
    prof_begin(a)
    a(f"""s_load_dwordx2 s[4:5], s[0:1], 80
    s_load_dwordx2 s[6:7], s[0:1], {0 if isC else 64}""")
    if not isC: a("s_load_dwordx2 s[16:17], s[0:1], 56")
    a(f"""v_lshrrev_b32 v{vT}, 6, v0
    v_and_b32 v0, 63, v0
    v_readfirstlane_b32 s{sW}, v{vT}
    v_lshlrev_b32 v{vL16}, 4, v0
    s_mov_b32 s{WS+2}, {hx(WS_BYTES)}
    s_mov_b32 s{WS+3}, 0x20000""")
    if isC:
        a(f"s_cmp_ge_u32 s2, 224\ns_cbranch_scc1 C_cs ; pend-ok")
    a(f"""s_lshr_b32 s{T}, s2, 3
    s_mul_i32 s{T+1}, s{T}, 37
    s_lshr_b32 s{T+1}, s{T+1}, 8              ; i / 7
    s_mul_i32 s{T+2}, s{T+1}, 7
    s_sub_u32 s{T+2}, s{T}, s{T+2}
    s_and_b32 s{T}, s2, 7
    s_lshl_b32 s{T}, s{T}, 2
    s_add_u32 s{T}, s{T}, s{T+1}
    s_and_b32 s{T+3}, s{sW}, 1
    s_lshr_b32 s{T+4}, s{sW}, 1               ; k half
    s_lshl_b32 s{sCT}, s{T+2}, 1
    s_add_u32 s{sCT}, s{sCT}, s{T+3}
    s_lshl_b32 s{T}, s{T}, 1
    s_add_u32 s{sTT}, s{T}, s{T+4}
    s_add_u32 s{T}, s{T}, s{T+3}
    s_mul_i32 s{T+5}, s{T+4}, {n*1024}
    s_mul_i32 s{sWo}, s{sCT}, {KS*1024}
    s_add_u32 s{sWo}, s{sWo}, s{T+5}
    s_add_u32 s{sWo}, s{sWo}, {hx(WB)}
    s_mul_i32 s{sAo}, s{T}, {KS*1024}
    s_add_u32 s{sAo}, s{sAo}, s{T+5}
    s_add_u32 s{sAo}, s{sAo}, {hx(AB)}
    s_mul_i32 s{sLm}, s{sW}, {RS}
    s_waitcnt lgkmcnt(0)
    s_mov_b32 s{WS}, s4
    s_mov_b32 s{WS+1}, s5""")
    marks = {}
    def issue(c):
        for i in range(CH):
            s = c * CH + i
            o = (i % 4) * 1024
            if i % 4 == 0: a(f"s_add_u32 m0, s{sLm}, {(s % RING) * 1024}")
            a(f"buffer_load_dwordx4 v{vL16}, s[{WS}:{WS+3}], s{sAo} offen offset:{o} lds")
            a(f"buffer_load_dwordx4 a[{4*s}:{4*s+3}], v{vL16}, s[{WS}:{WS+3}], s{sWo} offen offset:{o}")
            if i % 4 == 3 or i == CH - 1:
                a(f"s_add_u32 s{sAo}, s{sAo}, {o + 1024}\ns_add_u32 s{sWo}, s{sWo}, {o + 1024}")
        marks[c] = a.vm_issued()
    UP = min(NCH, 4)
    issue(0)
    a(f"""s_mov_b32 s{XS}, s6
    s_mov_b32 s{XS+1}, s7
    s_mov_b32 s{XS+2}, {hx(S*D*2)}
    s_mov_b32 s{XS+3}, 0x20000
    v_and_b32 v{vT}, 31, v0
    v_lshrrev_b32 v{vT+1}, 5, v0
    v_mul_u32_u24 v{vXo}, 896, v{vT}
    v_lshl_add_u32 v{vXo}, v{vT+1}, 4, v{vXo}
    s_mul_i32 s{T}, s{sTT}, {32*896}
    s_lshl_b32 s{T+1}, s{sCT}, 6
    s_add_u32 s{T+6}, s{T}, s{T+1}
    s_mul_i32 s{T}, s{sTT}, 14
    s_add_u32 s{T+7}, s{T}, s{sCT}
    s_lshl_b32 s{T+8}, s{T+7}, 11
    s_add_u32 s{T+8}, s{T+8}, {hx(HF)}""")
    for c in range(1, UP): issue(c)
    if isC:
        for j in range(2):
            a(f"buffer_load_dwordx4 v[{XR+4*j}:{XR+4*j+3}], v{vXo}, s[{XS}:{XS+3}], s{T+6} offen offset:{32*j}")
    else:
        for f in range(2):
            a(f"buffer_load_dwordx4 v[{XR+4*f}:{XR+4*f+3}], v{vL16}, s[{WS}:{WS+3}], s{T+8} offen offset:{1024*f}")
        a(f"v_lshl_add_u32 v{vT+2}, v{vT+1}, 3, s{T+1}")
        for g in range(4):
            a(f"global_load_dwordx2 v[{BR+2*g}:{BR+2*g+1}], v{vT+2}, s[16:17] offset:{16*g}")
    a(f"""s_lshr_b32 s{T}, s{sW}, 1
    s_mul_i32 s{T}, s{T}, {3*RS}
    v_add_u32 v{vR0}, s{T}, v{vL16}
    s_lshr_b32 s{T}, s{sW}, 1
    s_add_u32 s{T}, s{T}, 1
    s_mul_i32 s{T}, s{T}, {RS}
    v_add_u32 v{vR1}, s{T}, v{vL16}
    s_lshl_b32 s{T}, s{sW}, 12
    s_add_u32 s{T}, s{T}, {RED}
    v_add_u32 v{vRW}, s{T}, v{vL16}
    s_xor_b32 s{T+1}, s{sW}, 2
    s_lshl_b32 s{T+1}, s{T+1}, 12
    s_add_u32 s{T+1}, s{T+1}, {RED}
    v_add_u32 v{vRR}, s{T+1}, v{vL16}
    s_mov_b32 s{sMask}, 0xffff0000""")
    NB = len(FB)
    def reads(s):
        return [f"ds_read_b128 v[{FB[s%NB][j]}:{FB[s%NB][j]+3}], v{(vR0, vR1)[j]} offset:{(s % RING)*1024}" for j in range(2)]
    def ready(c):
        a.wait_vm(marks[c]); a("s_barrier")
        nx = None
        if c >= 1 and c + 3 < NCH and c + 3 < RCH: nx = c + 3
        elif c >= 2 and c + 3 < NCH: nx = c + 3
        if nx is not None: issue(nx)
    PD = 2
    stamp(a, 1)
    ready(0)
    stamp(a, 2)
    for s in range(PD):
        for l in reads(s): a(l)
    for s in range(n):
        nx = []
        if s + PD < n:
            if (s + PD) % CH == 0: ready((s + PD) // CH)
            nx = reads(s + PD)
        for j in (1, 0):
            c = "0" if s == 0 else f"v[{ACC[j]}:{ACC[j]+15}]"
            a(f"{MF} v[{ACC[j]}:{ACC[j]+15}], a[{4*s}:{4*s+3}], v[{FB[s%NB][j]}:{FB[s%NB][j]+3}], {c}")
            if nx: a(nx[j])
    stamp(a, 3)
    if isC:
        for j in range(2):
            for d in range(2): a(f"v_permlane32_swap_b32 v{XR+4*j+d}, v{XR+4*j+2+d}")
    U = FB[0][0]
    for r in range(8):
        a(f"v_lshlrev_b32 v{U+2*r}, 16, v{XR+r}\nv_and_b32 v{U+2*r+1}, s{sMask}, v{XR+r}")
    for g in range(4):
        a(f"ds_write_b128 v{vRW}, v[{ACC[1]+4*g}:{ACC[1]+4*g+3}] offset:{1024*g}")
    if not isC:
        for r in range(8):
            a(f"""v_lshlrev_b32 v{vT}, 16, v{BR+r}
            v_and_b32 v{vT+1}, s{sMask}, v{BR+r}
            v_pk_add_f32 v[{U+2*r}:{U+2*r+1}], v[{U+2*r}:{U+2*r+1}], v[{vT}:{vT+1}]""")
    o = ACC[0]
    for r in range(0, 16, 2):
        a(f"v_pk_add_f32 v[{o+r}:{o+r+1}], v[{o+r}:{o+r+1}], v[{U+r}:{U+r+1}]")
    a("s_waitcnt lgkmcnt(0)\ns_barrier")
    for g in range(4):
        a(f"ds_read_b128 v[{PR+4*g}:{PR+4*g+3}], v{vRR} offset:{1024*g}")
    for r in range(0, 16, 2):
        a(f"v_pk_add_f32 v[{o+r}:{o+r+1}], v[{o+r}:{o+r+1}], v[{PR+r}:{PR+r+1}]")
    for r in range(8):
        a(f"v_cvt_pk_bf16_f32 v{XR+r}, v{o+2*r}, v{o+2*r+1}")
    if isC:
        for f in range(2):
            a(f"buffer_store_dwordx4 v[{XR+4*f}:{XR+4*f+3}], v{vL16}, s[{WS}:{WS+3}], s{T+8} offen offset:{1024*f}")
        a(f"""v_pk_add_f32 v[{vT}:{vT+1}], v[{o}:{o+1}], v[{o+2}:{o+3}]
        v_pk_mul_f32 v[{vT+2}:{vT+3}], v[{o}:{o+1}], v[{o}:{o+1}]
        v_pk_fma_f32 v[{vT+2}:{vT+3}], v[{o+2}:{o+3}], v[{o+2}:{o+3}], v[{vT+2}:{vT+3}]""")
        for r in range(4, 16, 2):
            a(f"""v_pk_add_f32 v[{vT}:{vT+1}], v[{vT}:{vT+1}], v[{o+r}:{o+r+1}]
            v_pk_fma_f32 v[{vT+2}:{vT+3}], v[{o+r}:{o+r+1}], v[{o+r}:{o+r+1}], v[{vT+2}:{vT+3}]""")
        a(f"""v_add_f32 v{vT}, v{vT}, v{vT+1}
        v_add_f32 v{vT+1}, v{vT+2}, v{vT+3}
        v_and_b32 v{vT+4}, 31, v0
        v_mov_b32 v{vT+2}, v{vT}
        v_mov_b32 v{vT+3}, v{vT+1}
        v_lshlrev_b32 v{vT+4}, 3, v{vT+4}
        s_lshl_b32 s{T+7}, s{T+7}, 8
        s_add_u32 s{T+7}, s{T+7}, {hx(ST)}
        v_permlane32_swap_b32 v{vT}, v{vT+2}
        v_permlane32_swap_b32 v{vT+1}, v{vT+3}
        v_pk_add_f32 v[{vT}:{vT+1}], v[{vT}:{vT+1}], v[{vT+2}:{vT+3}]
        s_mov_b32 exec_hi, 0
        buffer_store_dwordx2 v[{vT}:{vT+1}], v{vT+4}, s[{WS}:{WS+3}], s{T+7} offen""")
    else:
        for j in range(2):
            for d in range(2): a(f"v_permlane32_swap_b32 v{XR+4*j+d}, v{XR+4*j+2+d}")
        for j in range(2):
            a(f"buffer_store_dwordx4 v[{XR+4*j}:{XR+4*j+3}], v{vXo}, s[{XS}:{XS+3}], s{T+6} offen offset:{32*j}")
    if PROF: a("s_waitcnt vmcnt(0)\ns_mov_b64 exec, -1")
    prof_end(a, 2 if isC else 4, sW, 4)
    a.label(f"{L}_end", ok=True)
    a("s_endpgm")
    if isC:
        a.label("C_cs", ok=True)
        a(f"""s_sub_u32 s{T}, s2, 224
        s_lshl_b32 s{T}, s{T}, 2
        s_add_u32 s{T}, s{T}, s{sW}
        s_cmp_ge_u32 s{T}, 56
        s_cbranch_scc1 C_end ; pend-ok
        s_mul_i32 s{sWo}, s{T}, {28*1024}
        s_add_u32 s{sWo}, s{sWo}, {hx(W1F)}
        s_waitcnt lgkmcnt(0)
        s_mov_b32 s{WS}, s4
        s_mov_b32 s{WS+1}, s5""")
        for s in range(28):
            a(f"buffer_load_dwordx4 a[{4*s}:{4*s+3}], v{vL16}, s[{WS}:{WS+3}], s{sWo} offen offset:{(s%4)*1024}")
            if s % 4 == 3: a(f"s_add_u32 s{sWo}, s{sWo}, 4096")
        for i in range(4): a(f"v_mov_b32 v{XR+i}, 0x3f803f80")
        a(f"""v_lshrrev_b32 v{vT}, 5, v0
        v_lshlrev_b32 v{vT}, 4, v{vT}
        s_lshl_b32 s{T}, s{T}, 7
        s_add_u32 s{T}, s{T}, {hx(CS1)}""")
        for s in range(28):
            c = "0" if s == 0 else f"v[{ACC[0]}:{ACC[0]+15}]"
            a(f"{MF} v[{ACC[0]}:{ACC[0]+15}], a[{4*s}:{4*s+3}], v[{XR}:{XR+3}], {c}")
        a("s_mov_b32 exec_lo, 1\ns_mov_b32 exec_hi, 1")
        for g in range(4):
            a(f"buffer_store_dwordx4 v[{ACC[0]+4*g}:{ACC[0]+4*g+3}], v{vT}, s[{WS}:{WS+3}], s{T} offen offset:{32*g}")
        a("s_endpgm")
    return a, lds_need(n, RING)
```

```python
from asmx import *
from common import *

D_ST = 4 * 28 * 1024
D_LDS = D_ST + 1024
C1 = -2.0 * math.sqrt(2.0 / math.pi) * math.log2(math.e)
C2 = C1 * 0.044715

def kernel_D():
    a = Asm("D")
    sW, WS = 3, 8
    sWo, sAo, sLm, sCT, sTB, sMask, sOut, sC2 = 20, 21, 22, 23, 24, 25, 26, 27
    T = 30
    vL16, vRd, vSt, vC1 = 1, 2, 3, 4
    vT = 8
    STR = 24
    CS, B1 = 40, 56
    FB = [72, 76, 80, 84]
    ACC = [88, 104]
    G = 120
    PK = 136
    a(f"""s_cmp_ge_u32 s2, 224
    s_cbranch_scc1 D_end""")
    prof_begin(a)
    a(f"""s_load_dwordx2 s[4:5], s[0:1], 80
    s_load_dwordx2 s[16:17], s[0:1], 40
    v_lshrrev_b32 v{vT}, 6, v0
    v_and_b32 v0, 63, v0
    v_readfirstlane_b32 s{sW}, v{vT}
    v_lshlrev_b32 v{vL16}, 4, v0
    s_mov_b32 s{WS+2}, {hx(WS_BYTES)}
    s_mov_b32 s{WS+3}, 0x20000
    s_lshr_b32 s{T}, s2, 3
    s_mul_i32 s{T+1}, s{T}, 37
    s_lshr_b32 s{T+1}, s{T+1}, 8              ; i / 7
    s_mul_i32 s{T+2}, s{T+1}, 7
    s_sub_u32 s{T+2}, s{T}, s{T+2}            ; i % 7
    s_and_b32 s{T}, s2, 6
    s_lshl_b32 s{T}, s{T}, 1
    s_add_u32 s{sTB}, s{T}, s{T+1}
    s_and_b32 s{T}, s2, 1
    s_mul_i32 s{T}, s{T}, 7
    s_add_u32 s{T}, s{T}, s{T+2}
    s_lshl_b32 s{sCT}, s{T}, 2
    s_add_u32 s{sCT}, s{sCT}, s{sW}
    s_mul_i32 s{sWo}, s{sCT}, {28*1024}
    s_add_u32 s{sWo}, s{sWo}, {hx(W1F)}
    s_mul_i32 s{sLm}, s{sW}, {7*1024}
    s_mul_i32 s{sAo}, s{sTB}, {4*28*1024}
    s_add_u32 s{sAo}, s{sAo}, s{sLm}
    s_add_u32 s{sAo}, s{sAo}, {hx(HF)}
    s_waitcnt lgkmcnt(0)
    s_mov_b32 s{WS}, s4
    s_mov_b32 s{WS+1}, s5""")
    marks = {}
    def dma(t):
        for i in range(7):
            if i % 4 == 0: a(f"s_add_u32 m0, s{sLm}, {t*28*1024 + i*1024}")
            a(f"buffer_load_dwordx4 v{vL16}, s[{WS}:{WS+3}], s{sAo} offen offset:{(i%4)*1024} lds")
            if i == 3: a(f"s_add_u32 s{sAo}, s{sAo}, 4096")
        a(f"s_add_u32 s{sAo}, s{sAo}, {28*1024 - 4096}")
        marks[t] = a.vm_issued()
    def wld(s0, s1):
        for s in range(s0, s1):
            a(f"buffer_load_dwordx4 a[{4*s}:{4*s+3}], v{vL16}, s[{WS}:{WS+3}], s{sWo} offen offset:{(s%4)*1024}")
            if s % 4 == 3: a(f"s_add_u32 s{sWo}, s{sWo}, 4096")
    dma(0)
    wld(0, 8)
    a(f"""v_and_b32 v{vT}, 31, v0
    v_lshrrev_b32 v{vT+1}, 5, v0
    v_lshlrev_b32 v{vSt}, 3, v{vT}
    v_mul_u32_u24 v{vT+2}, {7*256}, v{vT+1}
    v_add_u32 v{vT+2}, v{vT+2}, v{vSt}
    s_lshl_b32 s{T}, s{sTB}, 2
    s_add_u32 s{T}, s{T}, s{sW}
    s_mul_i32 s{T}, s{T}, {14*256}
    s_add_u32 s{T}, s{T}, {hx(ST)}""")
    for i in range(7):
        a(f"buffer_load_dwordx2 v[{STR+2*i}:{STR+2*i+1}], v{vT+2}, s[{WS}:{WS+3}], s{T} offen offset:{256*i}")
    wld(8, 28)
    dma(1)
    a(f"""v_lshlrev_b32 v{vT+3}, 4, v{vT+1}
    s_lshl_b32 s{T}, s{sCT}, 7
    s_add_u32 s{T}, s{T}, {hx(CS1)}
    s_lshl_b32 s{T+1}, s{sCT}, 6
    v_lshl_add_u32 v{vT+4}, v{vT+1}, 3, s{T+1}""")
    for g in range(4):
        a(f"buffer_load_dwordx4 v[{CS+4*g}:{CS+4*g+3}], v{vT+3}, s[{WS}:{WS+3}], s{T} offen offset:{32*g}")
        a(f"global_load_dwordx2 v[{PK+2*g}:{PK+2*g+1}], v{vT+4}, s[16:17] offset:{16*g}")
    a(f"""s_mov_b32 s{sMask}, 0xffff0000
    s_mov_b32 s{sC2}, {hx(f32(C2))}
    v_mov_b32 v{vC1}, {hx(f32(C1))}
    s_mul_i32 s{sOut}, s{sTB}, {4*112*1024}
    s_lshl_b32 s{T}, s{sCT}, 11
    s_add_u32 s{sOut}, s{sOut}, s{T}
    s_add_u32 s{sOut}, s{sOut}, {hx(H1F)}
    v_add_u32 v{vRd}, {56*1024}, v{vL16}""")
    stamp(a, 1)
    a.wait_vm(marks[0]); a("s_barrier")
    stamp(a, 2)
    def rd(k):
        t, s = divmod(k, 28)
        va, off = (vL16, k * 1024) if k < 56 else (vRd, (k - 56) * 1024)
        return f"ds_read_b128 v[{FB[k%4]}:{FB[k%4]+3}], v{va} offset:{off}"
    def stats():
        L = []
        for i in range(1, 7):
            L.append(f"v_pk_add_f32 v[{STR}:{STR+1}], v[{STR}:{STR+1}], v[{STR+2*i}:{STR+2*i+1}]")
        L += f"""v_mov_b32 v{STR+2}, v{STR}
        v_mov_b32 v{STR+3}, v{STR+1}
        s_lshl_b32 s{T}, s{sW}, 8
        s_add_u32 s{T}, s{T}, {D_ST}
        v_permlane32_swap_b32 v{STR}, v{STR+2}
        v_permlane32_swap_b32 v{STR+1}, v{STR+3}
        v_add_u32 v{vT}, s{T}, v{vSt}
        v_add_f32 v{STR}, v{STR}, v{STR+2}
        v_add_f32 v{STR+1}, v{STR+1}, v{STR+3}
        v_mul_f32 v{STR}, {hx(f32(-1.0/D))}, v{STR}
        v_mul_f32 v{STR+1}, {hx(f32(1.0/D))}, v{STR+1}
        v_fma_f32 v{STR+1}, -v{STR}, v{STR}, v{STR+1}
        v_max_f32 v{STR+1}, 0, v{STR+1}
        v_add_f32 v{STR+1}, {hx(f32(1e-5))}, v{STR+1}
        v_rsq_f32 v{STR+2}, v{STR+1}
        v_add_u32 v{vSt}, {D_ST}, v{vSt}
        v_mul_f32 v{STR+3}, v{STR}, v{STR+2}
        ds_write_b64 v{vT}, v[{STR+2}:{STR+3}]""".split("\n")
        for r in range(8):
            L += [f"v_lshlrev_b32 v{B1+2*r}, 16, v{PK+r}", f"v_and_b32 v{B1+2*r+1}, s{sMask}, v{PK+r}"]
        return [l.strip() for l in L]
    def gelu(t):
        acc = ACC[t & 1]; rs, mr = STR + 2 * t, STR + 2 * t + 1
        L = []
        for q in range(4):
            e = range(4 * q, 4 * q + 4)
            u = lambda i: G + i % 4
            x = lambda i: G + 4 + i % 4
            y = lambda i: G + 8 + i % 4
            L += [f"v_fma_f32 v{u(i)}, v{CS+i}, v{mr}, v{B1+i}" for i in e]
            L += [f"v_fmac_f32 v{u(i)}, v{acc+i}, v{rs}" for i in e]
            L += [f"v_mul_f32 v{x(i)}, v{u(i)}, v{u(i)}" for i in e]
            L += [f"v_fma_f32 v{x(i)}, v{x(i)}, s{sC2}, v{vC1}" for i in e]
            L += [f"v_mul_f32 v{x(i)}, v{x(i)}, v{u(i)}" for i in e]
            L += [f"v_exp_f32 v{x(i)}, v{x(i)}" for i in e]
            L += [f"v_add_f32 v{x(i)}, 1.0, v{x(i)}" for i in e]
            L += [f"v_rcp_f32 v{x(i)}, v{x(i)}" for i in e]
            L += [f"v_mul_f32 v{u(i)}, v{u(i)}, v{x(i)}" for i in e]
            L += [f"v_cvt_pk_bf16_f32 v{PK+2*q+j}, v{u(2*j)}, v{u(2*j+1)}" for j in range(2)]
            if q % 2 == 1:
                f = q // 2
                L.append(f"buffer_store_dwordx4 v[{PK+4*f}:{PK+4*f+3}], v{vL16}, s[{WS}:{WS+3}], s{sOut} offen offset:{1024*f}")
        L.append(f"s_add_u32 s{sOut}, s{sOut}, {112*1024}")
        return L
    PD = 3
    for k in range(PD): a(rd(k))
    for t in range(4):
        side = stats() if t == 0 else gelu(t - 1)
        skip = 8 if t == 0 else 1
        per = -(-len(side) // (28 - skip - (3 if t == 0 else 0)))
        for s in range(28):
            k = 28 * t + s
            if k + PD < 112 and (k + PD) % 28 == 0:
                tn = (k + PD) // 28
                a.wait_vm(marks[tn], " lgkmcnt(0)" if tn == 1 else ""); a("s_barrier")
                if tn == 1:
                    for i in range(4): a(f"ds_read_b64 v[{STR+2*i}:{STR+2*i+1}], v{vSt} offset:{256*i}")
            if t == 0 and s == 4: dma(2)
            if t == 0 and s == 12: dma(3)
            c = "0" if s == 0 else f"v[{ACC[t&1]}:{ACC[t&1]+15}]"
            a(f"{MF} v[{ACC[t&1]}:{ACC[t&1]+15}], a[{4*s}:{4*s+3}], v[{FB[k%4]}:{FB[k%4]+3}], {c}")
            if k + PD < 112: a(rd(k + PD))
            if s >= skip:
                for l in side[:per]: a(l)
                side = side[per:]
        assert not side
    stamp(a, 3)
    for l in gelu(3): a(l)
    if PROF: a("s_waitcnt vmcnt(0)")
    prof_end(a, 3, sW, 4)
    a.label("D_end", ok=True)
    a("s_endpgm")
    return a
```

```python
import sys
from gen import *
import ka, kb, kc, kd
c, cl = kc.kernel_CE("C"); e, el = kc.kernel_CE("E")
ks = [dict(label=NAME+"_kernel", asm=ka.kernel_A(), grid=256, block=256, lds=ka.A_LDS, vgpr=256, accum=256),
      dict(label="attn_kernel", asm=kb.kernel_B(), grid=256, block=256, lds=kb.B_LDS, vgpr=192, accum=192),
      dict(label="proj_kernel", asm=c, grid=256, block=256, lds=cl, vgpr=232, accum=120),
      dict(label="ffn1_kernel", asm=kd.kernel_D(), grid=224, block=256, lds=kd.D_LDS, vgpr=256, accum=144),
      dict(label="ffn2_kernel", asm=e, grid=224, block=256, lds=el, vgpr=344, accum=120)]
build(ks, sys.argv[1])
```
